```python
import torch

def _softmax(x, axis=-1):
    return torch.softmax(x, dim=axis)
def _gelu(x):
    return torch.nn.functional.gelu(x, approximate="tanh")
def _silu(x):
    return torch.nn.functional.silu(x)
def _sigmoid(x):
    return torch.sigmoid(x)
def _layernorm(x, axis=-1, eps=1e-5):
    m = x.mean(dim=axis, keepdim=True)
    v = x.var(dim=axis, keepdim=True, unbiased=False)
    return (x - m) / torch.sqrt(v + eps)
def _scatter_add(tgt, idx, src, axis=0):
    return tgt.clone().index_add_(axis, idx, src)
def _segment_sum(src, seg, n):
    out = torch.zeros((n,) + src.shape[1:], dtype=src.dtype)
    return out.index_add_(0, seg, src)
def _pad(x, pw):
    flat = tuple(v for pair in reversed(pw) for v in pair)
    return torch.nn.functional.pad(x, flat)

kernel_name = 'gated_mix__sliding_block__mixer_channel_mlp__prompt'

def setup_inputs():

    _w = (lambda a: (lambda t: t.to(torch.bfloat16) if t.is_floating_point() else t)(torch.as_tensor(a)))
    def _A_setup():
        B, S, D = 1, 2048, 512
        return {
            "x": _w((lambda *s: torch.randn(*s, dtype=torch.bfloat16) * 0.05)(B, S, D)),
            "wqkv": _w((lambda *s: torch.randn(*s, dtype=torch.bfloat16) * 0.8)(D, 3 * D)),
            "wo": _w((lambda *s: torch.randn(*s, dtype=torch.bfloat16) * 0.05)(D, D)),
        }
    _A_in = _A_setup()

    def _B_setup():
        B, S, D, F = 1, 2048, 512, 1792
        return {
            "x": _w((lambda *s: torch.randn(*s, dtype=torch.bfloat16) * 0.05)(B, S, D)),
            "w1": _w((lambda *s: torch.randn(*s, dtype=torch.bfloat16) * 3.2)(D, F) * (D ** -0.5)),
            "b1": _w((lambda *s: torch.randn(*s, dtype=torch.bfloat16) * 1.6)(F)),
            "w2": _w((lambda *s: torch.randn(*s, dtype=torch.bfloat16) * 0.1)(F, D) * (F ** -0.5)),
            "b2": _w((lambda *s: torch.randn(*s, dtype=torch.bfloat16) * 0.2)(D)),
        }
    _B_in = _B_setup()

    return {
        "A_x": _A_in["x"],
        "A_wqkv": _A_in["wqkv"],
        "A_wo": _A_in["wo"],
        "B_x": _B_in["x"],
        "B_w1": _B_in["w1"],
        "B_b1": _B_in["b1"],
        "B_w2": _B_in["w2"],
        "B_b2": _B_in["b2"],
        "gate_w": _w((lambda *s: torch.randn(*s, dtype=torch.bfloat16) * 0.05)(512) * 16.0),
    }

def reference(A_x, A_wqkv, A_wo, B_x, B_w1, B_b1, B_w2, B_b2, gate_w):
    def _A_ref(x, wqkv, wo):
        B, S, D = x.shape
        H = 32; Dh = D // H; W = 256
        qkv = (lambda x, *d: x.permute(*d))((x @ wqkv).reshape(B, S, 3, H, Dh), 2, 0, 3, 1, 4)
        q, k, v = qkv[0], qkv[1], qkv[2]
        scores = torch.einsum("bhqd,bhkd->bhqk", q, k) * (Dh ** -0.5)
        idx = torch.arange(S)
        mask = (idx[:, None] - idx[None, :] >= 0) & (idx[:, None] - idx[None, :] < W)
        scores = torch.where(mask[None, None], scores, -1e9)
        p = _softmax(scores, axis=-1)
        o = torch.einsum("bhqk,bhkd->bhqd", p, v)
        return (lambda x, *d: x.permute(*d))(o, 0, 2, 1, 3).reshape(B, S, D) @ wo

    def _B_ref(x, w1, b1, w2, b2):
        y = _layernorm(x, axis=-1)
        h = _gelu(torch.einsum("bsd,df->bsf", y, w1) + b1)
        return torch.einsum("bsf,fd->bsd", h, w2) + b2

    x = A_x
    g = _sigmoid((x * gate_w).sum(-1, keepdims=True))
    a = _A_ref(x, A_wqkv, A_wo)
    b = _B_ref(x, B_w1, B_b1, B_w2, B_b2)
    return g * a + (1 - g) * b
```

```python
import re

def split_ops(s):
    out, depth, cur = [], 0, ""
    for ch in s:
        if ch == "[": depth += 1
        if ch == "]": depth -= 1
        if ch == "," and depth == 0:
            out.append(cur.strip()); cur = ""
        else:
            cur += ch
    if cur.strip(): out.append(cur.strip())
    return out

_R1 = re.compile(r"^(-|\|)?(?:abs\()?([vas])(\d+)\b")
_R2 = re.compile(r"^(-|\|)?(?:abs\()?([vas])\[(\d+):(\d+)\]")
def regs_of(tok):
    tok = tok.strip()
    m = _R2.match(tok)
    if m: return {(m.group(2), i) for i in range(int(m.group(3)), int(m.group(4)) + 1)}
    m = _R1.match(tok)
    if m: return {(m.group(2), int(m.group(3)))}
    w = tok.split()[0] if tok else ""
    if w in ("vcc", "vcc_lo", "vcc_hi"): return {("s", "vcc")}
    if w in ("exec", "exec_lo", "exec_hi"): return {("s", "exec")}
    if w == "m0": return {("s", "m0")}
    return set()

TRANS = ("v_exp_f32", "v_log_f32", "v_rcp_f32", "v_rsq_f32", "v_sqrt_f32", "v_sin_f32", "v_cos_f32")
S_NODST = ("s_cmp", "s_waitcnt", "s_barrier", "s_nop", "s_cbranch", "s_branch", "s_setprio", "s_sleep", "s_bitcmp", "s_endpgm", "s_setreg")

def classify(text):
    t = text.strip()
    op = t.split()[0]
    rest = t[len(op):].strip()
    ops = split_ops(rest)
    R = [regs_of(o) for o in ops]
    un = lambda L: set().union(*L) if L else set()
    d = dict(op=op, cls=None, w=set(), r=set(), rc=set(), rab=set(), passes=0, ws=1, data=set())
    if op.startswith("v_mfma"):
        d["cls"] = "mfma"; d["w"] = R[0]; d["rab"] = R[1] | R[2]; d["rc"] = R[3]; d["r"] = R[1] | R[2] | R[3]
        d["passes"] = 8 if "32x32x16" in op else 4 if "16x16x32" in op else 2 if "4x4x4" in op else None
        assert d["passes"], op
    elif op.startswith("v_"):
        d["cls"] = "valu"
        if op.startswith("v_permlane") and "swap" in op:
            d["w"] = R[0] | R[1]; d["r"] = R[0] | R[1]; d["perm"] = True
        elif op.startswith("v_nop"):
            pass
        else:
            d["w"] = R[0]; d["r"] = un(R[1:])
            if op.startswith(("v_fmac", "v_dot2c", "v_pk_fmac")): d["r"] |= R[0]
            if op.startswith(("v_add_co", "v_sub_co", "v_addc_co")):
                d["w"] = R[0] | R[1]; d["r"] = un(R[2:])
            if op.startswith("v_cmpx"): d["w"] |= {("s", "exec")}
        if any(op.startswith(x) for x in TRANS): d["trans"] = True
        if op.startswith("v_dot"): d["dot"] = True
        if "dpp" in op or "row_" in rest or "quad_perm" in rest:
            d["dpp"] = True
            d["r"] |= R[0]
        if op.startswith(("v_readfirstlane", "v_readlane")): d["rdl"] = True
    elif op.startswith("ds_read") or op.startswith("ds_bpermute") or op.startswith("ds_swizzle"):
        d["cls"] = "dsr"; d["w"] = R[0]; d["r"] = un(R[1:])
    elif op.startswith("ds_"):
        d["cls"] = "dsw"; d["r"] = un(R)
    elif op.startswith(("buffer_load", "global_load")):
        if re.search(r"\blds\b", rest) or "load_lds" in op:
            d["cls"] = "dma"; d["r"] = un(R) | {("s", "m0")}
        else:
            d["cls"] = "vld"; d["w"] = R[0]; d["r"] = un(R[1:])
    elif op.startswith(("buffer_store", "global_store")):
        d["cls"] = "vst"; d["r"] = un(R)
        dat = R[0] if op.startswith("buffer") else R[1]
        if "x4" in op or "x3" in op: d["data"] = dat
    elif op.startswith(("buffer_atomic", "global_atomic")):
        d["cls"] = "vst"; d["r"] = un(R)
        if re.search(r"\bsc0\b", rest): d["cls"] = "vld"; d["w"] = R[0]
    elif op.startswith(("buffer_wbl2", "buffer_inv")):
        d["cls"] = "vst"
    elif op.startswith(("s_load", "s_memtime", "s_memrealtime", "s_buffer_load")):
        d["cls"] = "smem"; d["w"] = R[0]; d["r"] = un(R[1:])
    elif op.startswith("s_"):
        d["cls"] = "salu"
        if op.startswith(S_NODST):
            d["r"] = un(R)
            if op == "s_nop": d["ws"] = int(ops[0], 0) + 1
        else:
            d["w"] = R[0]; d["r"] = un(R[1:])
            if "saveexec" in op: d["w"] |= {("s", "exec")}
    else:
        raise ValueError("unknown op " + text)
    return d

isv = lambda S: {x for x in S if x[0] in "va"}
iss = lambda S: {x for x in S if x[0] == "s"}
XDL_RD = {2: 5, 4: 8, 8: 12}
XDL_C = {2: 4, 4: 6, 8: 10}
XDL_WAR = {2: 1, 4: 3, 8: 7}

def need(p, n):
    k = 0
    pc, nc = p["cls"], n["cls"]
    if pc == "valu":
        wv, wsg = isv(p["w"]), iss(p["w"])
        if nc == "mfma" and wv & n["r"]: k = max(k, 3 if p.get("dot") else 2)
        if nc == "valu":
            if p.get("trans") and wv & n["r"]: k = max(k, 1)
            if p.get("dot") and wv & (n["r"] | n["w"]) and not (n["op"] == p["op"]): k = max(k, 3)
            if p.get("dot") and n["op"] == p["op"] and wv & n["r"] and not (wv & n["w"]): k = max(k, 3)
            if n.get("perm") and wv & n["r"]: k = max(k, 2)
            if n.get("dpp") and wv & n["r"]: k = max(k, 2)
            if n.get("rdl") and wv & n["r"]: k = max(k, 1)
            if wsg & n["r"]: k = max(k, 4 if n.get("rdl") else 2)
            if ("s", "exec") in wsg and (n.get("dpp")): k = max(k, 5)
            if ("s", "exec") in wsg and (n.get("rdl") or n.get("perm")): k = max(k, 4)
        if p.get("dot") and nc in ("dsw", "vst", "dsr", "vld", "dma") and wv & n["r"]: k = max(k, 3)
        if p.get("trans") and nc in ("dsw", "vst") and wv & n["r"]: k = max(k, 1)
        if nc in ("vld", "vst", "dma") and wsg & n["r"]: k = max(k, 5)
        if nc == "mfma" and ("s", "exec") in wsg: k = max(k, 4)
        if nc == "salu" and wsg & n["r"]: k = max(k, 1)
        if nc == "salu" and n["op"].startswith("s_cbranch_vcc") and ("s", "vcc") in wsg: k = max(k, 1)
    if pc == "mfma":
        ps = p["passes"]
        if nc == "mfma":
            if p["w"] & n["rab"]: k = max(k, XDL_RD[ps])
            if p["w"] & n["rc"]:
                if p["w"] == n["rc"] and ps == n["passes"]: k = max(k, 2 if ps == 2 else 0)
                else: k = max(k, XDL_C[ps])
            elif p["w"] & n["w"]: k = max(k, XDL_C[ps])
        else:
            if p["w"] & (n["r"] | n["w"]): k = max(k, XDL_RD[ps])
            if nc in ("valu", "dsr", "vld") and p["rc"] & n["w"]: k = max(k, XDL_WAR[ps])
    if pc == "salu" and ("s", "m0") in p["w"] and nc == "dma": k = max(k, 1)
    if pc == "vst" and p["data"] & n["w"]: k = max(k, 2)
    return k

class K:
    def __init__(self):
        self.lines = []; self.hist = []; self.lg = []; self.vm = []
        self.nnop = 0; self.ninst = 0
    def raw(self, t): self.lines.append(t)
    def c(self, t): self.lines.append("    ; " + t)
    def _put(self, text, d):
        self.lines.append("    " + text); self.hist.append(d); self.ninst += 1
        if len(self.hist) > 40: self.hist.pop(0)
    def wait(self, vm=None, lg=None):
        parts = []
        if vm is not None and len(self.vm) > vm:
            parts.append(f"vmcnt({min(vm,63)})"); self.vm = self.vm[len(self.vm) - vm:] if vm else []
        if lg is not None and len(self.lg) > lg:
            parts.append(f"lgkmcnt({min(lg,15)})"); self.lg = self.lg[len(self.lg) - lg:] if lg else []
        if parts:
            t = "s_waitcnt " + " ".join(parts); self._put(t, classify(t))
    def force_wait(self, vm=None, lg=None):
        parts = []
        if vm is not None:
            parts.append(f"vmcnt({vm})"); self.vm = self.vm[max(0, len(self.vm) - vm):] if vm else []
        if lg is not None:
            parts.append(f"lgkmcnt({lg})"); self.lg = self.lg[max(0, len(self.lg) - lg):] if lg else []
        t = "s_waitcnt " + " ".join(parts); self._put(t, classify(t))
    def wait_tag(self, tag):
        idx = [i for i, e in enumerate(self.vm) if e["tag"] == tag]
        if idx: self.wait(vm=len(self.vm) - 1 - idx[-1])
    def wait_lgtag(self, tag):
        idx = [i for i, e in enumerate(self.lg) if e["tag"] == tag]
        if idx: self.wait(lg=len(self.lg) - 1 - idx[-1])
    def I(self, text, tag=None):
        d = classify(text)
        touch = d["r"] | d["w"]
        vmn = lgn = None
        for i, e in enumerate(self.vm):
            if e["dst"] & touch: vmn = len(self.vm) - 1 - i
        for i, e in enumerate(self.lg):
            if e["dst"] & touch: lgn = len(self.lg) - 1 - i
        if lgn is not None and any(e["smem"] for e in self.lg): lgn = 0
        self.wait(vm=vmn, lg=lgn)
        dist = 0; nn = 0
        for p in reversed(self.hist):
            nn = max(nn, need(p, d) - dist)
            dist += p["ws"]
            if dist > 20: break
        while nn > 0:
            m = min(nn, 16); t = f"s_nop {m-1}"; self._put(t, classify(t)); nn -= m; self.nnop += m
        self._put(text, d)
        c = d["cls"]
        if c in ("dsr", "dsw"): self.lg.append(dict(dst=d["w"], smem=False, tag=tag))
        if c == "smem": self.lg.append(dict(dst=d["w"], smem=True, tag=tag))
        if c in ("vld", "vst", "dma"): self.vm.append(dict(dst=d["w"], tag=tag))
        assert len(self.vm) <= 63, "too many vm ops in flight"
        return d
    def Is(self, L):
        for t in L: self.I(t)
    def label(self, name, nops=0):
        self.lines.append(name + ":")
    def pad(self, n):
        while n > 0:
            m = min(n, 16); t = f"s_nop {m-1}"; self._put(t, classify(t)); n -= m
    def drain(self):
        self.wait(vm=0, lg=0)
        dist = 0; nn = 0
        for p in reversed(self.hist):
            lim = 12 if p["cls"] == "mfma" else 5 if p["cls"] == "valu" else 2 if p["cls"] == "vst" else 1 if p["cls"] == "salu" and ("s","m0") in p["w"] else 0
            nn = max(nn, lim - dist); dist += p["ws"]
            if dist > 20: break
        self.pad(nn)
    def hazfence(self):
        dist = 0; nn = 0
        for p in reversed(self.hist):
            lim = 12 if p["cls"] == "mfma" else 5 if p["cls"] == "valu" else 2 if p["cls"] == "vst" else 1 if p["cls"] == "salu" and ("s","m0") in p["w"] else 0
            nn = max(nn, lim - dist); dist += p["ws"]
            if dist > 20: break
        self.pad(nn)
    def text(self): return "\n".join(self.lines) + "\n"

def vr(b, n=1, t="v"):
    return f"{t}{b}" if n == 1 else f"{t}[{b}:{b+n-1}]"
def ar(b, n=1): return vr(b, n, "a")
def sr(b, n=1): return vr(b, n, "s")
```

```python
from gen1 import *

ONES = 49152
def attention(k):
    prologue(k, "P2_END")
    sHP, sN, sCNT = 58, 59, 68
    MK = 70
    k.I(f"s_and_b32 s{sT[0]}, s2, 7")
    k.I(f"s_lshr_b32 s{sT[1]}, s2, 3")
    k.I(f"s_and_b32 s{sHP}, s{sT[1]}, 1")
    k.I(f"s_lshl1_add_u32 s{sHP}, s{sT[0]}, s{sHP}")
    k.I(f"s_lshr_b32 s{sRB}, s{sT[1]}, 1")
    k.I(f"s_lshl2_add_u32 s{sBLK}, s{sRB}, s{sW}")
    k.I(f"v_lshlrev_b32 v{vL16}, 4, v0")
    k.wait(lg=0)
    srd(k, S_WS, PWS, WS_SIZE)
    vQ, vKA, vVA, vVS, vM8 = 4, 12, 13, 15, 16
    vS, vNM, vO, vP, vLD = 32, 64, 96, 128, 160
    vKF, vVF = 208, 216
    vt = 24
    k.I(f"s_lshl_b32 s{sT[2]}, s{sHP}, 6")
    k.I(f"s_add_u32 s{sT[2]}, s{sT[2]}, s{sBLK}")
    k.I(f"s_lshl_b32 s{sT[3]}, s{sT[2]}, 11")
    k.I(f"s_add_u32 s{sT[3]}, s{sT[3]}, {WS_Q}")
    k.I(f"buffer_load_dwordx4 v[{vQ}:{vQ+3}], v{vL16}, s[{S_WS}:{S_WS+3}], s{sT[3]} offen{SC}")
    k.I(f"buffer_load_dwordx4 v[{vQ+4}:{vQ+7}], v{vL16}, s[{S_WS}:{S_WS+3}], s{sT[3]} offen offset:1024{SC}")
    k.I(f"s_lshl_b32 s{sT[3]}, s{sT[2]}, 12")
    k.I(f"s_lshl_b32 s{sT[4]}, s{sW}, 12")
    k.I(f"v_add_u32 v{vt}, s{sT[4]}, v{vL16}")
    for i in (2, 1, 0):
        if i < 2:
            k.I(f"s_cmp_lt_u32 s{sRB}, {2-i}")
            k.I(f"s_cbranch_scc1 P2_LD")
            k.I(f"s_sub_u32 s{sT[3]}, s{sT[3]}, 16384")
        for q in range(4):
            r = vLD + i * 16 + q * 4
            k.I(f"buffer_load_dwordx4 v[{r}:{r+3}], v{vL16}, s[{S_WS}:{S_WS+3}], s{sT[3]} offen offset:{q*1024}{SC}")
    k.label("P2_LD")
    k.I(f"v_and_b32 v{vt+1}, 31, v0")
    k.I(f"v_lshrrev_b32 v{vt+2}, 5, v0")
    k.I(f"v_lshlrev_b32 v{vt+2}, 2, v{vt+2}")
    k.I(f"v_sub_u32 v{vt+1}, v{vt+1}, v{vt+2}")
    for r in range(16):
        k.I(f"v_cmp_gt_i32 s[{MK+2*r}:{MK+2*r+1}], {8*(r>>2)+(r&3)}, v{vt+1}")
    k.I(f"v_mov_b32 v{vt+2}, 0xffff")
    k.I(f"v_mov_b32 v{vt+3}, 0xffff0000")
    for i in range(8):
        k.I(f"v_cndmask_b32 v{vM8+i}, 0, v{vt+2}, s[{MK+4*i}:{MK+4*i+1}]")
        k.I(f"v_cndmask_b32 v{vt+4}, 0, v{vt+3}, s[{MK+4*i+2}:{MK+4*i+3}]")
        k.I(f"v_or_b32 v{vM8+i}, v{vM8+i}, v{vt+4}")
    for i in range(4): k.I(f"v_mov_b32 v{vP+i}, 0x3f803f80")
    k.I(f"v_mov_b32 v{vt+2}, {ONES}")
    k.I(f"ds_write_b128 v{vt+2}, v[{vP}:{vP+3}]")
    k.I(f"ds_write_b128 v{vt+2}, v[{vP}:{vP+3}] offset:1024")
    k.force_wait(vm=0)
    for i in range(3):
        for q in range(4):
            r = vLD + i * 16 + q * 4
            k.I(f"ds_write_b128 v{vt}, v[{r}:{r+3}] offset:{i*16384 + q*1024}")
    k.I(f"s_min_u32 s{sN}, s{sBLK}, 7")
    vKB, vVB = 2, 30
    k.I(f"v_mov_b32 v{vKB}, v{vt}")
    k.I(f"v_and_b32 v{vt+1}, 0x2f, v0")
    k.I(f"v_lshlrev_b32 v{vt+1}, 4, v{vt+1}")
    k.I(f"v_add_u32 v{vt+1}, s{sT[4]}, v{vt+1}")
    k.I(f"v_add_u32 v{vt+1}, 2048, v{vt+1}")
    k.I(f"v_add_u32 v{vt+3}, 256, v{vt+1}")
    k.I(f"v_and_b32 v{vt+4}, 16, v0")
    k.I(f"v_cmp_eq_u32 vcc, 0, v{vt+4}")
    k.I(f"v_cndmask_b32 v{vVB}, v{vt+2}, v{vt+1}, vcc")
    k.I(f"v_cndmask_b32 v{vVB+1}, v{vt+2}, v{vt+3}, vcc")
    k.I(f"v_mov_b32 v{vt+4}, 4096")
    k.I(f"v_cndmask_b32 v{vVS}, 0, v{vt+4}, vcc")
    k.wait(lg=0)
    k.I("s_barrier")
    NEG = fb(-1e30)
    def qk(hh, dst, cin):
        k.I(f"v_mfma_f32_32x32x16_bf16 v[{dst}:{dst+15}], v[{vKF+4*hh}:{vKF+4*hh+3}], v[{vQ+4*hh}:{vQ+4*hh+3}], {cin}")
    def ldk(addr, off):
        for hh in range(2): k.I(f"ds_read_b128 v[{vKF+4*hh}:{vKF+4*hh+3}], v{addr} offset:{off + hh*1024}")
    def merged(lbl, cin):
        ldk(vKB, 8 * 4096)
        for hh in range(2): qk(hh, vS + 16 * hh, cin(hh))
        k.drain()
        k.I(f"s_cmp_lt_u32 s{sBLK}, 8")
        k.I(f"s_cbranch_scc1 {lbl}_A")
        ldk(vKB, 0)
        for hh in range(2): qk(hh, vP + 16 * hh, cin(hh))
        k.drain()
        k.I(f"s_branch {lbl}_B")
        k.label(f"{lbl}_A")
        for i in range(32): k.I(f"v_mov_b32 v{vP+i}, {NEG}")
        k.label(f"{lbl}_B")
        for hh in range(2):
            for r in range(16):
                k.I(f"v_cndmask_b32 v{vS+16*hh+r}, v{vS+16*hh+r}, v{vP+16*hh+r}, s[{MK+2*r}:{MK+2*r+1}]")
    def loop_setup():
        k.I(f"s_sub_u32 s{sT[0]}, 8, s{sN}")
        k.I(f"s_lshl_b32 s{sT[1]}, s{sT[0]}, 12")
        k.I(f"v_add_u32 v{vKA}, s{sT[1]}, v{vKB}")
        for hh in range(2): k.I(f"v_mad_u32_u24 v{vVA+hh}, v{vVS}, s{sT[0]}, v{vVB+hh}")
        k.I(f"s_mov_b32 s{sCNT}, s{sN}")
    vMX = 26
    merged("P2_MA", lambda hh: "0")
    for hh in range(2):
        k.I(f"v_max_f32 v{vMX+hh}, v{vS+16*hh}, v{vS+16*hh+1}")
        for r in range(2, 16, 2): k.I(f"v_max3_f32 v{vMX+hh}, v{vMX+hh}, v{vS+16*hh+r}, v{vS+16*hh+r+1}")
    loop_setup()
    k.drain()
    k.I(f"s_cmp_eq_u32 s{sCNT}, 0")
    k.I("s_cbranch_scc1 P2_AE")
    k.label("P2_AL")
    ldk(vKA, 0)
    k.I(f"v_add_u32 v{vKA}, 4096, v{vKA}")
    for hh in range(2): qk(hh, vS + 16 * hh, "0")
    for hh in range(2):
        for r in range(0, 16, 2): k.I(f"v_max3_f32 v{vMX+hh}, v{vMX+hh}, v{vS+16*hh+r}, v{vS+16*hh+r+1}")
    k.drain()
    k.I(f"s_sub_u32 s{sCNT}, s{sCNT}, 1")
    k.I(f"s_cmp_lg_u32 s{sCNT}, 0")
    k.I("s_cbranch_scc1 P2_AL")
    k.label("P2_AE")
    for hh in range(2):
        half_sum(k, vMX + hh, vt, "v_max_f32")
        for r in range(16): k.I(f"v_sub_f32 v{vNM+16*hh+r}, 0, v{vMX+hh}")
    nm = lambda hh: f"v[{vNM+16*hh}:{vNM+16*hh+15}]"
    def ldv(addrs, off):
        for hh in range(2):
            for kh in range(2):
                r = vVF + 8 * hh + 4 * kh
                k.I(f"ds_read_b128 v[{r}:{r+3}], v{addrs+hh} offset:{off + kh*1024}")
    def expcvt(hh, dst):
        for r in range(16): k.I(f"v_exp_f32 v{vS+16*hh+r}, v{vS+16*hh+r}")
        for i in range(8): k.I(f"v_cvt_pk_bf16_f32 v{dst+i}, v{vS+16*hh+2*i}, v{vS+16*hh+2*i+1}")
    def pv(hh, p, first=False):
        o = f"v[{vO+16*hh}:{vO+16*hh+15}]"
        for kh in range(2):
            r = vVF + 8 * hh + 4 * kh
            k.I(f"v_mfma_f32_32x32x16_bf16 {o}, v[{r}:{r+3}], v[{p+4*kh}:{p+4*kh+3}], " + ("0" if first and kh == 0 else o))
    merged("P2_MB", nm)
    for hh in range(2): k.I(f"v_lshl_add_u32 v{vVA+hh}, v{vVS}, 3, v{vVB+hh}")
    ldv(vVA, 0)
    for hh in range(2):
        expcvt(hh, vP + 16 * hh)
        for i in range(8): k.I(f"v_bfi_b32 v{vP+16*hh+8+i}, v{vM8+i}, 0, v{vP+16*hh+i}")
        pv(hh, vP + 16 * hh + 8, True)
    k.drain()
    k.I(f"s_cmp_lt_u32 s{sBLK}, 8")
    k.I("s_cbranch_scc1 P2_NF")
    ldv(vVB, 0)
    for hh in range(2):
        for i in range(8): k.I(f"v_and_b32 v{vP+16*hh+i}, v{vM8+i}, v{vP+16*hh+i}")
        pv(hh, vP + 16 * hh)
    k.drain()
    k.label("P2_NF")
    loop_setup()
    k.drain()
    k.I(f"s_cmp_eq_u32 s{sCNT}, 0")
    k.I("s_cbranch_scc1 P2_BE")
    k.label("P2_BL")
    ldk(vKA, 0)
    ldv(vVA, 0)
    k.I(f"v_add_u32 v{vKA}, 4096, v{vKA}")
    for hh in range(2): k.I(f"v_add_u32 v{vVA+hh}, v{vVS}, v{vVA+hh}")
    for hh in range(2): qk(hh, vS + 16 * hh, nm(hh))
    for hh in range(2):
        expcvt(hh, vP + 16 * hh)
        pv(hh, vP + 16 * hh)
    k.drain()
    k.I(f"s_sub_u32 s{sCNT}, s{sCNT}, 1")
    k.I(f"s_cmp_lg_u32 s{sCNT}, 0")
    k.I("s_cbranch_scc1 P2_BL")
    k.label("P2_BE")
    k.I(f"s_mul_i32 s{sT[0]}, s{sBLK}, 144")
    k.I(f"s_lshl1_add_u32 s{sT[0]}, s{sHP}, s{sT[0]}")
    k.I(f"s_add_u32 s{sT[0]}, s{sT[0]}, 112")
    k.I(f"s_lshl_b32 s{sT[0]}, s{sT[0]}, 10")
    k.I(f"s_add_u32 s{sT[0]}, s{sT[0]}, {WS_ACT}")
    for hh in range(2):
        o = vO + 16 * hh
        k.I(f"v_rcp_f32 v{o+8}, v{o+8}")
        for i in range(8): k.I(f"v_mul_f32 v{o+i}, v{o+8}, v{o+i}")
        for i in range(4): k.I(f"v_cvt_pk_bf16_f32 v{vP+4*hh+i}, v{o+2*i}, v{o+2*i+1}")
        k.I(f"buffer_store_dwordx4 v[{vP+4*hh}:{vP+4*hh+3}], v{vL16}, s[{S_WS}:{S_WS+3}], s{sT[0]} offen offset:{hh*1024}{SC}")
    k.label("P2_END")
    k.I("s_endpgm")

def final(k):
    prologue(k, "P3_END")
    sMB, sNB, sA0, sA1, sWOF, sM0 = 57, 58, 68, 69, 70, 71
    S_W2, S_WO, S_OUT, S_B2 = S_X, S_W, S_W1, S_A
    k.I(f"s_and_b32 s{sT[0]}, s2, 7")
    k.I(f"s_lshr_b32 s{sT[1]}, s2, 3")
    k.I(f"s_and_b32 s{sMB}, s{sT[1]}, 3")
    k.I(f"s_lshl2_add_u32 s{sMB}, s{sT[0]}, s{sMB}")
    k.I(f"s_lshr_b32 s{sNB}, s{sT[1]}, 2")
    k.I(f"v_lshlrev_b32 v{vL16}, 4, v0")
    k.wait(lg=0)
    srd(k, S_W2, PW2, 1792 * 512 * 2)
    srd(k, S_WO, PWO, 512 * 512 * 2)
    srd(k, S_OUT, POUT, 2048 * 512 * 2)
    srd(k, S_WS, PWS, WS_SIZE)
    srd(k, S_B2, PB2, 512 * 2)
    vWD, vTRa, vG, vB2, vt = 2, 6, 8, 12, 20
    vAH, vAO = 128, 192
    RING = 18
    unit_voff(k, vWD, vt, vt + 1, stride=1024)
    tr_base(k, vTRa, vTRa + 1, vt, 512)
    k.I(f"s_mul_i32 s{sM0}, s{sW}, {RING*2048}")
    k.I(f"v_add_u32 v{vTRa}, s{sM0}, v{vTRa}")
    k.I(f"v_add_u32 v{vTRa+1}, s{sM0}, v{vTRa+1}")
    k.I(f"v_and_b32 v{vt}, 31, v0")
    k.I(f"v_lshlrev_b32 v{vt}, 2, v{vt}")
    k.I(f"s_lshl_b32 s{sT[0]}, s{sMB}, 8")
    k.I(f"s_add_u32 s{sT[0]}, s{sT[0]}, {WS_G}")
    k.I(f"buffer_load_dword v{vG}, v{vt}, s[{S_WS}:{S_WS+3}], s{sT[0]} offen{SC}")
    k.I(f"buffer_load_dword v{vG+1}, v{vt}, s[{S_WS}:{S_WS+3}], s{sT[0]} offen offset:128{SC}")
    k.I(f"s_and_b32 s{sT[1]}, s{sW}, 1")
    k.I(f"s_lshl1_add_u32 s{sT[1]}, s{sNB}, s{sT[1]}")
    k.I(f"s_lshl_b32 s{sT[1]}, s{sT[1]}, 6")
    k.I(f"v_lshrrev_b32 v{vt+1}, 5, v0")
    k.I(f"v_lshlrev_b32 v{vt+1}, 3, v{vt+1}")
    for i in range(4):
        k.I(f"buffer_load_dwordx2 v[{vB2+2*i}:{vB2+2*i+1}], v{vt+1}, s[{S_B2}:{S_B2+3}], s{sT[1]} offen offset:{16*i}")
    k.I(f"s_mul_i32 s{sA0}, s{sMB}, {2*144*1024}")
    k.I(f"s_mul_i32 s{sT[2]}, s{sW}, {28*1024}")
    k.I(f"s_add_u32 s{sA0}, s{sA0}, {WS_ACT}")
    k.I(f"s_add_u32 s{sT[3]}, s{sA0}, {112*1024}")
    k.I(f"s_add_u32 s{sA0}, s{sA0}, s{sT[2]}")
    k.I(f"s_add_u32 s{sA1}, s{sA0}, {144*1024}")
    k.I(f"s_lshl_b32 s{sT[2]}, s{sW}, 13")
    k.I(f"s_add_u32 s{sT[3]}, s{sT[3]}, s{sT[2]}")
    k.I(f"s_mul_i32 s{sWOF}, s{sW}, {448*1024}")
    k.I(f"s_lshl_b32 s{sT[4]}, s{sNB}, 7")
    k.I(f"s_add_u32 s{sWOF}, s{sWOF}, s{sT[4]}")
    k.I(f"s_lshl_b32 s{sT[5]}, s{sW}, 17")
    k.I(f"s_add_u32 s{sT[5]}, s{sT[5]}, s{sT[4]}")
    NPF = 14
    def issue(pr):
        s = 2 * pr
        if s == 28:
            k.I(f"s_mov_b32 s{sA0}, s{sT[3]}")
            k.I(f"s_add_u32 s{sA1}, s{sA0}, {144*1024}")
            k.I(f"s_mov_b32 s{sWOF}, s{sT[5]}")
        dma4(k, vWD, S_W2 if s < 28 else S_WO, sWOF, f"s_add_u32 m0, s{sM0}, {(s % RING)*2048}", ("w", pr))
        k.I(f"s_add_u32 s{sWOF}, s{sWOF}, {32*1024}")
        for d in range(2):
            r = ((s + d) % 16) * 8
            k.I(f"buffer_load_dwordx4 a[{r}:{r+3}], v{vL16}, s[{S_WS}:{S_WS+3}], s{sA0} offen offset:{d*1024}{SC}")
            k.I(f"buffer_load_dwordx4 a[{r+4}:{r+7}], v{vL16}, s[{S_WS}:{S_WS+3}], s{sA1} offen offset:{d*1024}{SC}")
        k.I(f"s_add_u32 s{sA0}, s{sA0}, 2048")
        k.I(f"s_add_u32 s{sA1}, s{sA1}, 2048")
    for pr in range(NPF // 2): issue(pr)
    aWF = 128
    def rd(s):
        if s % 2 == 0: k.wait_tag(("w", s // 2))
        for T in range(2):
            for j in range(2):
                r = aWF + (s % 2) * 8 + T * 4 + 2 * j
                k.I(f"ds_read_b64_tr_b16 a[{r}:{r+1}], v{vTRa+T} offset:{(s % RING)*2048 + j*1024}")
    rd(0)
    for s in range(36):
        if s + 1 < 36: rd(s + 1)
        base = vAH if s < 28 else vAO
        for rbk in range(2):
            for T in range(2):
                acc = base + (rbk * 2 + T) * 16
                w_ = aWF + (s % 2) * 8 + T * 4
                a_ = (s % 16) * 8 + rbk * 4
                k.I(f"v_mfma_f32_32x32x16_bf16 v[{acc}:{acc+15}], a[{w_}:{w_+3}], a[{a_}:{a_+3}], " + ("0" if s in (0, 28) else f"v[{acc}:{acc+15}]"))
        if s % 2 == 1 and (s + 1 + NPF) // 2 - 1 < 18 and True:
            pr = (s - 1) // 2 + NPF // 2
            if pr < 18: issue(pr)
    k.I(f"v_sub_f32 v{vG+2}, 1.0, v{vG}")
    k.I(f"v_sub_f32 v{vG+3}, 1.0, v{vG+1}")
    for st in range(4):
        for i in range(16):
            a = vAH + st * 16 + i
            k.I(f"v_mul_f32 v{a}, v{vG+2+(st>>1)}, v{a}")
    for st in range(4):
        for i in range(16):
            k.I(f"v_fmac_f32 v{vAH+st*16+i}, v{vG+(st>>1)}, v{vAO+st*16+i}")
    k.I("s_barrier")
    k.I(f"s_lshl_b32 s{sT[0]}, s{sW}, 12")
    k.I(f"v_add_u32 v{vt}, s{sT[0]}, v{vL16}")
    for st in range(4):
        for q in range(4):
            a = vAH + st * 16 + 4 * q
            k.I(f"ds_write_b128 v{vt}, v[{a}:{a+3}] offset:{st*16384 + q*1024}")
    k.I(f"s_lshl_b32 s{sT[0]}, s{sW}, 14")
    k.I(f"v_add_u32 v{vt}, s{sT[0]}, v{vL16}")
    k.wait(lg=0)
    k.I("s_barrier")
    R = 32
    for sw in range(4):
        for q in range(4):
            a = R + sw * 16 + 4 * q
            k.I(f"ds_read_b128 v[{a}:{a+3}], v{vt} offset:{sw*4096 + q*1024}")
    k.I(f"s_cmp_lt_u32 s{sW}, 2")
    k.I(f"s_cselect_b64 vcc, -1, 0")
    k.I(f"v_cndmask_b32 v{vG+2}, v{vG+3}, v{vG+2}, vcc")
    for i in range(16):
        k.I(f"v_add_f32 v{R+i}, v{R+i}, v{R+16+i}")
        k.I(f"v_add_f32 v{R+32+i}, v{R+32+i}, v{R+48+i}")
    for i in range(16):
        if i % 2 == 0: k.I(f"v_lshlrev_b32 v{R+16+i}, 16, v{vB2+i//2}")
        else: k.I(f"v_and_b32 v{R+16+i}, 0xffff0000, v{vB2+i//2}")
        k.I(f"v_add_f32 v{R+i}, v{R+i}, v{R+32+i}")
    for i in range(16): k.I(f"v_fmac_f32 v{R+i}, v{vG+2}, v{R+16+i}")
    for i in range(8): k.I(f"v_cvt_pk_bf16_f32 v{R+32+i}, v{R+2*i}, v{R+2*i+1}")
    for pr in range(2):
        b = R + 32 + 4 * pr
        k.I(f"v_permlane32_swap_b32 v{b}, v{b+2}")
        k.I(f"v_permlane32_swap_b32 v{b+1}, v{b+3}")
    k.I(f"v_and_b32 v{vt}, 31, v0")
    k.I(f"v_lshlrev_b32 v{vt}, 10, v{vt}")
    k.I(f"v_lshrrev_b32 v{vt+1}, 5, v0")
    k.I(f"v_lshl_add_u32 v{vt}, v{vt+1}, 4, v{vt}")
    k.I(f"s_lshr_b32 s{sT[0]}, s{sW}, 1")
    k.I(f"s_lshl1_add_u32 s{sT[0]}, s{sMB}, s{sT[0]}")
    k.I(f"s_lshl_b32 s{sT[0]}, s{sT[0]}, 15")
    k.I(f"s_add_u32 s{sT[0]}, s{sT[0]}, s{sT[1]}")
    for pr in range(2):
        b = R + 32 + 4 * pr
        k.I(f"buffer_store_dwordx4 v[{b}:{b+3}], v{vt}, s[{S_OUT}:{S_OUT+3}], s{sT[0]} offen offset:{32*pr}")
    k.label("P3_END")
    k.I("s_endpgm")
```

```python
import sys, math, struct
from asmgen import *

NAME = "gated_mix__sliding_block__mixer_channel_mlp__prompt"
WS_KV, WS_Q, WS_ACT, WS_G = 0, 4 << 20, 6 << 20, 16 << 20
WS_SIZE = 268435456
LOG2E = 1.4426950408889634
def fb(x): return "0x%08x" % struct.unpack("<I", struct.pack("<f", x))[0]
C0 = -2.0 * math.sqrt(2.0 / math.pi) * LOG2E
C1 = C0 * 0.044715
SC = ""

S_X, S_W, S_W1, S_WS, S_A, S_B = 8, 12, 16, 20, 24, 28
P0 = 32
sW, sRB, sCG, sP, sBLK = 56, 57, 58, 59, 60
sT = [61, 62, 63, 64, 65, 66, 67]
sXO, sWO, sWST, sMX, sMW = 68, 69, 70, 71, 72
sC2, sCD, sM2 = 73, 74, 75
sTA, sTC, sTD = 76, 77, 78
sKVO, sACTO = 79, 80
sPERM = 81
sGR = 82

def srd(k, d, p, nbytes):
    k.I(f"s_mov_b32 s{d}, s{p}")
    k.I(f"s_mov_b32 s{d+1}, s{p+1}")
    k.I(f"s_mov_b32 s{d+2}, {nbytes}")
    k.I(f"s_mov_b32 s{d+3}, 0x20000")

def prologue(k, endlabel):
    k.I("s_cmp_ge_u32 s2, 256")
    k.I(f"s_cbranch_scc1 {endlabel}")
    k.I(f"s_load_dwordx16 s[{P0}:{P0+15}], s[0:1], 0")
    k.I(f"s_load_dwordx8 s[{P0+16}:{P0+23}], s[0:1], 64")
    k.I("v_lshrrev_b32 v1, 6, v0")
    k.I(f"v_readfirstlane_b32 s{sW}, v1")
    k.I("v_and_b32 v0, 63, v0")
PX, PWQKV, PWO, PBX, PW1, PB1, PW2, PB2, PGW, POUT, PDBG, PWS = [P0 + 2 * i for i in range(12)]

def half_sum(k, a, t, op="v_add_f32"):
    k.I(f"v_mov_b32 v{t}, v{a}")
    k.I(f"v_permlane32_swap_b32 v{a}, v{t}")
    k.I(f"{op} v{a}, v{a}, v{t}")

def tr_base(k, dst0, dst1, t, hmul):
    k.I(f"v_lshrrev_b32 v{t}, 5, v0")
    k.I(f"v_mul_u32_u24 v{dst0}, {hmul}, v{t}")
    k.I(f"v_bfe_u32 v{t}, v0, 2, 2")
    k.I(f"v_lshl_add_u32 v{dst0}, v{t}, 7, v{dst0}")
    k.I(f"v_bfe_u32 v{t}, v0, 4, 1")
    k.I(f"v_lshl_add_u32 v{dst0}, v{t}, 5, v{dst0}")
    k.I(f"v_and_b32 v{t}, 3, v0")
    k.I(f"v_lshl_add_u32 v{dst0}, v{t}, 3, v{dst0}")
    k.I(f"v_bfe_u32 v{t}, v0, 3, 1")
    k.I(f"v_lshl_add_u32 v{dst0}, v{t}, 6, v{dst0}")
    k.I(f"v_xor_b32 v{dst1}, 64, v{dst0}")

def unit_voff(k, dst, t, t2, stride_s=None, stride=None):
    k.I(f"v_bfe_u32 v{t}, v0, 4, 1")
    k.I(f"v_lshlrev_b32 v{t}, 2, v{t}")
    k.I(f"v_and_b32 v{t2}, 7, v0")
    k.I(f"v_xor_b32 v{t}, v{t}, v{t2}")
    k.I(f"v_lshlrev_b32 v{t}, 4, v{t}")
    k.I(f"v_lshrrev_b32 v{t2}, 3, v0")
    if stride_s is not None:
        k.I(f"v_mad_u32_u24 v{dst}, v{t2}, s{stride_s}, v{t}")
        k.I(f"s_lshl_b32 s{sT[0]}, s{stride_s}, 3")
        k.I(f"s_sub_u32 s{sT[0]}, s{sT[0]}, 1024")
        for q in range(1, 4): k.I(f"v_add_u32 v{dst+q}, s{sT[0]}, v{dst+q-1}")
    else:
        k.I(f"v_mul_u32_u24 v{dst}, {stride}, v{t2}")
        k.I(f"v_add_u32 v{dst}, v{dst}, v{t}")
        for q in range(1, 4): k.I(f"v_add_u32 v{dst+q}, {8*stride-1024}, v{dst+q-1}")

def dma4(k, voff, srdn, soff, m0expr, tag):
    k.I(m0expr)
    for q in range(4):
        o = f" offset:{1024*q}" if q else ""
        k.I(f"buffer_load_dwordx4 v{voff+q}, s[{srdn}:{srdn+3}], s{soff} offen{o} lds", tag=tag)

vL16 = 1
vXD, vWD, vW1D, vMD = 2, 6, 10, 14
vXR = 18
vTR = 26
vTRD = 30
vCS = 31
vONE = 36
vST = 40
vB1 = 56
vCSA = 60
vBF = 64
vAF = 68
vGC = 72
vPW, vPR = 78, 79
vT = 80
vACC = 128
aX = 0
aW = 128
SLOT = 32768
TAB = 131072

def gelu_tile(k, acc, tileidx_s, ti):
    t = vT
    k.I(f"ds_read_b128 v[{t}:{t+3}], v{vPR} offset:{ti*1024}")
    k.I(f"v_add_f32 v{t}, v{t}, v{t+1}")
    k.I(f"v_add_f32 v{t+2}, v{t+2}, v{t+3}")
    k.I(f"v_add_f32 v{t}, v{t}, v{t+2}")
    k.I(f"v_and_b32 v{t+1}, 0xffff0000, v{t}")
    k.I(f"v_sub_f32 v{t+1}, v{t}, v{t+1}")
    k.I(f"v_and_b32 v{t+2}, 0xffff0000, v{t+1}")
    k.I(f"v_sub_f32 v{t+2}, v{t+1}, v{t+2}")
    k.I(f"v_perm_b32 v{vAF}, v{t}, v{t}, s{sPERM}")
    k.I(f"v_perm_b32 v{vAF+1}, v{t+1}, v{t}, s{sPERM}")
    k.I(f"v_perm_b32 v{vAF+2}, v{t+2}, v{t+1}, s{sPERM}")
    k.I(f"v_lshl_or_b32 v{vAF+3}, v{vB1+ti}, 16, v{vB1+ti}")
    k.I(f"v_mfma_f32_32x32x16_bf16 v[{acc}:{acc+15}], v[{vAF}:{vAF+3}], v[{vBF}:{vBF+3}], v[{acc}:{acc+15}]")
    z = vT + 8
    for i in range(0, 16, 2):
        k.I(f"v_pk_mul_f32 v[{z+i}:{z+i+1}], v[{acc+i}:{acc+i+1}], v[{acc+i}:{acc+i+1}]")
    for i in range(0, 16, 2):
        k.I(f"v_pk_fma_f32 v[{z+i}:{z+i+1}], v[{z+i}:{z+i+1}], v[{vGC+2}:{vGC+3}], v[{vGC}:{vGC+1}]")
    for i in range(0, 16, 2):
        k.I(f"v_pk_mul_f32 v[{z+i}:{z+i+1}], v[{z+i}:{z+i+1}], v[{acc+i}:{acc+i+1}]")
    for i in range(16): k.I(f"v_exp_f32 v{z+i}, v{z+i}")
    for i in range(0, 16, 2):
        k.I(f"v_pk_fma_f32 v[{z+i}:{z+i+1}], v[{z+i}:{z+i+1}], v[{vGC+4}:{vGC+5}], v[{vGC+4}:{vGC+5}]")
    for i in range(16): k.I(f"v_rcp_f32 v{z+i}, v{z+i}")
    for i in range(0, 16, 2):
        k.I(f"v_pk_mul_f32 v[{z+i}:{z+i+1}], v[{z+i}:{z+i+1}], v[{acc+i}:{acc+i+1}]")
    o = vT + 24 + (ti & 1) * 8
    for i in range(8): k.I(f"v_cvt_pk_bf16_f32 v{o+i}, v{z+2*i}, v{z+2*i+1}")
    k.I(f"buffer_store_dwordx4 v[{o}:{o+3}], v{vL16}, s[{S_WS}:{S_WS+3}], s{tileidx_s} offen{SC}")
    k.I(f"buffer_store_dwordx4 v[{o+4}:{o+7}], v{vL16}, s[{S_WS}:{S_WS+3}], s{tileidx_s} offen offset:1024{SC}")

def store_tile(k, acc, soff, off, o, scale=None):
    if scale is not None:
        for i in range(16): k.I(f"v_mul_f32 v{acc+i}, {fb(scale)}, v{acc+i}")
    for i in range(8): k.I(f"v_cvt_pk_bf16_f32 v{o+i}, v{acc+2*i}, v{acc+2*i+1}")
    k.I(f"buffer_store_dwordx4 v[{o}:{o+3}], v{vL16}, s[{S_WS}:{S_WS+3}], s{soff} offen offset:{off}{SC}")
    k.I(f"buffer_store_dwordx4 v[{o+4}:{o+7}], v{vL16}, s[{S_WS}:{S_WS+3}], s{soff} offen offset:{off+1024}{SC}")

def colsum_block(k, addr, offs, ti):
    t = vT
    for i, o in enumerate(offs): k.I(f"ds_read_b64_tr_b16 v[{t+2*i}:{t+2*i+1}], v{addr} offset:{o}")
    for i in range(2 * len(offs)): k.I(f"v_dot2_f32_bf16 v{vCSA+ti}, v{t+i}, v{vONE}, v{vCSA+ti}")

def phase1(k):
    prologue(k, "P1_END")
    k.I(f"s_and_b32 s{sT[0]}, s2, 7")
    k.I(f"s_lshr_b32 s{sT[1]}, s2, 3")
    k.I(f"s_and_b32 s{sRB}, s{sT[0]}, 1")
    k.I(f"s_lshl_b32 s{sRB}, s{sRB}, 3")
    k.I(f"s_and_b32 s{sT[2]}, s{sT[1]}, 7")
    k.I(f"s_add_u32 s{sRB}, s{sRB}, s{sT[2]}")
    k.I(f"s_lshr_b32 s{sCG}, s{sT[0]}, 1")
    k.I(f"s_lshl_b32 s{sCG}, s{sCG}, 2")
    k.I(f"s_lshr_b32 s{sT[2]}, s{sT[1]}, 3")
    k.I(f"s_add_u32 s{sCG}, s{sCG}, s{sT[2]}")
    k.I(f"s_lshr_b32 s{sP}, s{sCG}, 1")
    k.I(f"s_lshl2_add_u32 s{sBLK}, s{sRB}, s{sW}")
    k.I(f"s_mov_b32 s{sPERM}, 0x07060302")
    k.I(f"s_mul_i32 s{sT[0]}, s{sP}, 7")
    k.I(f"s_bitcmp1_b32 s{sP}, 0")
    k.I(f"s_cselect_b32 s{sTA}, 3, 0")
    k.I(f"s_cselect_b32 s{sTC}, 1, 4")
    k.I(f"s_cselect_b32 s{sTD}, 0, 6")
    k.I(f"s_add_u32 s{sTA}, s{sTA}, s{sT[0]}")
    k.I(f"s_add_u32 s{sTC}, s{sTC}, s{sT[0]}")
    k.I(f"s_add_u32 s{sTD}, s{sTD}, s{sT[0]}")
    k.I(f"s_add_u32 s{sT[0]}, s{sTA}, 2")
    k.I(f"s_bitcmp1_b32 s{sCG}, 0")
    k.I(f"s_cselect_b32 s{sTC}, s{sT[0]}, s{sTC}")
    k.I(f"s_lshr_b32 s{sT[1]}, s{sW}, 1")
    k.I(f"s_and_b32 s{sT[2]}, s{sCG}, 1")
    k.I(f"s_and_b32 s{sT[3]}, s{sT[1]}, s{sT[2]}")
    k.I(f"s_add_u32 s{sT[4]}, s{sT[1]}, 1")
    k.I(f"s_lshl_b32 s{sT[4]}, s{sT[4]}, 10")
    k.I(f"s_cmp_eq_u32 s{sT[2]}, 1")
    k.I(f"s_cselect_b32 s{sT[4]}, 0, s{sT[4]}")
    k.I(f"s_lshl_b32 s{sT[5]}, s{sP}, 7")
    k.I(f"s_add_u32 s{sT[4]}, s{sT[4]}, s{sT[5]}")
    k.I(f"s_lshl_b32 s{sT[5]}, s{sTA}, 6")
    k.I(f"s_cmp_eq_u32 s{sT[3]}, 1")
    k.I(f"s_cselect_b32 s{sWO}, s{sT[5]}, s{sT[4]}")
    k.I(f"s_movk_i32 s{sWST}, 3072")
    k.I(f"s_cselect_b32 s{sWST}, 3584, s{sWST}")
    k.wait(lg=0)
    k.I(f"s_cselect_b32 s{S_W}, s{PW1}, s{PWQKV}")
    k.I(f"s_cselect_b32 s{S_W+1}, s{PW1+1}, s{PWQKV+1}")
    k.I(f"s_lshl_b32 s{S_W+2}, s{sWST}, 9")
    k.I(f"s_mov_b32 s{S_W+3}, 0x20000")
    srd(k, S_X, PX, 2048 * 512 * 2)
    srd(k, S_W1, PW1, 512 * 1792 * 2)
    srd(k, S_WS, PWS, WS_SIZE)
    srd(k, S_A, PB1, 1792 * 2)
    srd(k, S_B, PGW, 512 * 2)
    k.I(f"s_and_b32 s{sT[5]}, s{sW}, 1")
    k.I(f"s_lshl_b32 s{sT[5]}, s{sT[5]}, 5")
    k.I(f"s_mul_i32 s{sT[5]}, s{sT[5]}, s{sWST}")
    k.I(f"s_add_u32 s{sWO}, s{sWO}, s{sT[5]}")
    k.I(f"s_lshl_b32 s{sXO}, s{sBLK}, 15")
    k.I(f"s_lshl_b32 s{sMX}, s{sW}, 12")
    k.I(f"s_add_u32 s{sMW}, s{sMX}, 16384")
    k.I(f"s_lshl_b32 s{sM2}, s{sW}, 13")
    k.I(f"v_lshlrev_b32 v{vL16}, 4, v0")
    t, t2 = vT, vT + 1
    k.I(f"v_and_b32 v{t}, 7, v0")
    k.I(f"v_lshrrev_b32 v{t2}, 4, v0")
    k.I(f"v_xor_b32 v{t}, v{t}, v{t2}")
    k.I(f"v_lshlrev_b32 v{t}, 4, v{t}")
    k.I(f"v_lshrrev_b32 v{t2}, 3, v0")
    k.I(f"v_lshl_add_u32 v{vXD}, v{t2}, 10, v{t}")
    k.I(f"v_xor_b32 v{vXD+1}, 64, v{vXD}")
    k.I(f"v_add_u32 v{vXD+1}, {8192-1024}, v{vXD+1}")
    k.I(f"v_add_u32 v{vXD+2}, {2*(8192-1024)}, v{vXD}")
    k.I(f"v_add_u32 v{vXD+3}, {2*(8192-1024)}, v{vXD+1}")
    unit_voff(k, vWD, t, t2, stride_s=sWST)
    k.I(f"s_lshl_b32 s{sWST}, s{sWST}, 6")
    def issue_stage(c):
        so = (c % 4) * SLOT
        if c < 8:
            dma4(k, vXD, S_X, sXO, f"s_add_u32 m0, s{sMX}, {so}", ("st", c))
            dma4(k, vWD, S_W, sWO, f"s_add_u32 m0, s{sMW}, {so}", ("st", c))
            k.I(f"s_add_u32 s{sXO}, s{sXO}, 128")
            k.I(f"s_add_u32 s{sWO}, s{sWO}, s{sWST}")
        elif c < 10:
            for g in range(2):
                dma4(k, vW1D, S_W1, sC2, f"s_add_u32 m0, s{sM2}, {so + g*4096}", ("st", c))
                k.I(f"s_add_u32 s{sC2}, s{sC2}, {32*3584 if g == 0 else (256-32)*3584}")
        else:
            for g in range(2):
                dma4(k, vMD, S_W1, sCD, f"s_add_u32 m0, s{sM2}, {so + g*4096}", ("st", c))
                k.I(f"s_add_u32 s{sCD}, s{sCD}, {64*3584}")
    g0 = vT + 8
    k.I(f"s_lshl_b32 s{sGR}, s{sBLK}, 5")
    k.I(f"s_lshl1_add_u32 s{sGR}, s{sCG}, s{sGR}")
    k.I(f"s_lshl_b32 s{sT[1]}, s{sGR}, 10")
    k.I(f"buffer_load_dwordx4 v[{g0}:{g0+3}], v{vL16}, s[{S_X}:{S_X+3}], s{sT[1]} offen")
    k.I(f"buffer_load_dwordx4 v[{g0+4}:{g0+7}], v{vL16}, s[{S_X}:{S_X+3}], s{sT[1]} offen offset:1024")
    k.I(f"buffer_load_dwordx4 v[{g0+8}:{g0+11}], v{vL16}, s[{S_B}:{S_B+3}], 0 offen")
    k.I(f"v_and_b32 v{t}, 31, v0")
    k.I(f"v_lshlrev_b32 v{t}, 1, v{t}")
    k.I(f"s_lshl_b32 s{sT[2]}, s{sTC}, 6")
    k.I(f"buffer_load_ushort v{vB1}, v{t}, s[{S_A}:{S_A+3}], s{sT[2]} offen")
    k.I(f"buffer_load_ushort v{vB1+1}, v{t}, s[{S_A}:{S_A+3}], s{sT[2]} offen offset:64")
    k.I(f"s_bitcmp1_b32 s{sCG}, 0")
    k.I(f"s_cselect_b32 s{sT[2]}, s{sTA}, s{sTD}")
    k.I(f"s_lshl_b32 s{sT[2]}, s{sT[2]}, 6")
    k.I(f"buffer_load_ushort v{vB1+2}, v{t}, s[{S_A}:{S_A+3}], s{sT[2]} offen")
    k.I(f"buffer_load_ushort v{vB1+3}, v{t}, s[{S_A}:{S_A+3}], s{sT[2]} offen offset:64")
    for c in range(4): issue_stage(c)
    unit_voff(k, vW1D, t, t2, stride=3584)
    k.I(f"v_lshrrev_b32 v{t2}, 2, v0")
    k.I(f"v_mul_u32_u24 v{vMD}, 3584, v{t2}")
    k.I(f"v_and_b32 v{t}, 3, v0")
    k.I(f"v_lshl_add_u32 v{vMD}, v{t}, 4, v{vMD}")
    for q in range(1, 4): k.I(f"v_add_u32 v{vMD+q}, {16*3584-1024}, v{vMD+q-1}")
    k.I(f"s_mul_i32 s{sC2}, s{sW}, {64*3584}")
    k.I(f"s_lshl_b32 s{sT[2]}, s{sTC}, 6")
    k.I(f"s_add_u32 s{sC2}, s{sC2}, s{sT[2]}")
    k.I(f"s_mul_i32 s{sCD}, s{sW}, {128*3584}")
    k.I(f"s_lshl_b32 s{sT[2]}, s{sTD}, 6")
    k.I(f"s_add_u32 s{sCD}, s{sCD}, s{sT[2]}")
    k.I(f"v_bfe_u32 v{t}, v0, 1, 3")
    k.I(f"v_lshrrev_b32 v{t2}, 5, v0")
    k.I(f"v_xor_b32 v{t}, v{t}, v{t2}")
    k.I(f"v_lshlrev_b32 v{t}, 4, v{t}")
    k.I(f"v_and_b32 v{t2}, 31, v0")
    k.I(f"v_lshl_add_u32 v{t}, v{t2}, 7, v{t}")
    k.I(f"v_add_u32 v{vXR}, s{sMX}, v{t}")
    for s in range(1, 4): k.I(f"v_xor_b32 v{vXR+s}, {32*s}, v{vXR}")
    for s in range(4): k.I(f"v_add_u32 v{vXR+4+s}, 0x10000, v{vXR+s}")
    tr_base(k, vTR, vTR + 1, t, 1024)
    k.I(f"v_add_u32 v{vTR+2}, 0x10000, v{vTR}")
    k.I(f"v_add_u32 v{vTR+3}, 0x10000, v{vTR+1}")
    k.I(f"v_lshrrev_b32 v{t}, 5, v0")
    k.I(f"v_lshlrev_b32 v{vTRD}, 9, v{t}")
    k.I(f"v_bfe_u32 v{t}, v0, 2, 2")
    k.I(f"v_lshl_add_u32 v{vTRD}, v{t}, 6, v{vTRD}")
    k.I(f"v_bfe_u32 v{t}, v0, 4, 1")
    k.I(f"v_lshl_add_u32 v{vTRD}, v{t}, 5, v{vTRD}")
    k.I(f"v_and_b32 v{t}, 3, v0")
    k.I(f"v_lshl_add_u32 v{vTRD}, v{t}, 3, v{vTRD}")
    k.I(f"v_add_u32 v{vTRD}, 0x10000, v{vTRD}")
    k.I(f"s_lshl_b32 s{sT[2]}, s{sW}, 11")
    for i in range(4): k.I(f"v_add_u32 v{vCS+i}, s{sT[2]}, v{vTR+i}")
    k.I(f"s_lshl_b32 s{sT[2]}, s{sW}, 10")
    k.I(f"v_add_u32 v{vCS+4}, s{sT[2]}, v{vTRD}")
    k.I(f"v_add_u32 v{vPR}, {TAB}, v{vL16}")
    k.I(f"s_lshl_b32 s{sT[2]}, s{sW}, 2")
    k.I(f"v_add_u32 v{vPW}, s{sT[2]}, v{vPR}")
    k.I(f"v_mov_b32 v{vONE}, 0x3f803f80")
    k.I(f"v_mov_b32 v{vONE+1}, 0x3f803f80")
    for i in range(16): k.I(f"v_mov_b32 v{vST+i}, 0")
    for i in range(4): k.I(f"v_mov_b32 v{vCSA+i}, 0")
    k.I(f"s_lshl_b32 s{sT[2]}, s{sP}, 7")
    k.I(f"s_add_u32 s{sT[2]}, s{sT[2]}, s{sBLK}")
    k.I(f"s_lshl_b32 s{sT[3]}, s{sT[2]}, 12")
    k.I(f"s_lshl_b32 s{sT[4]}, s{sT[2]}, 11")
    k.I(f"s_add_u32 s{sT[4]}, s{sT[4]}, {WS_Q}")
    k.I(f"s_bitcmp1_b32 s{sCG}, 0")
    k.I(f"s_cselect_b32 s{sKVO}, s{sT[4]}, s{sT[3]}")
    k.I(f"s_mul_i32 s{sACTO}, s{sBLK}, {144*1024}")
    k.I(f"s_add_u32 s{sACTO}, s{sACTO}, {WS_ACT}")
    ga, gb = vT + 4, vT + 5
    k.I(f"v_mov_b32 v{ga}, 0"); k.I(f"v_mov_b32 v{gb}, 0")
    for i in range(4):
        k.I(f"v_dot2_f32_bf16 v{ga}, v{g0+i}, v{g0+8+i}, v{ga}")
        k.I(f"v_dot2_f32_bf16 v{gb}, v{g0+4+i}, v{g0+8+i}, v{gb}")
    k.I(f"v_permlane32_swap_b32 v{ga}, v{gb}")
    k.I(f"v_add_f32 v{ga}, v{ga}, v{gb}")
    for m in ("quad_perm:[1,0,3,2]", "quad_perm:[2,3,0,1]", "row_half_mirror", "row_mirror"):
        k.I(f"v_add_f32_dpp v{ga}, v{ga}, v{ga} {m} row_mask:0xf bank_mask:0xf")
    k.I(f"v_mov_b32 v{gb}, v{ga}")
    k.I(f"v_permlane16_swap_b32 v{ga}, v{gb}")
    k.I(f"v_add_f32 v{ga}, v{ga}, v{gb}")
    k.I(f"v_mul_f32 v{ga}, {fb(-LOG2E)}, v{ga}")
    k.I(f"v_exp_f32 v{ga}, v{ga}")
    k.I(f"v_add_f32 v{ga}, 1.0, v{ga}")
    k.I(f"v_rcp_f32 v{ga}, v{ga}")
    k.I(f"v_lshrrev_b32 v{gb}, 5, v0")
    k.I(f"v_lshlrev_b32 v{gb}, 2, v{gb}")
    k.I(f"s_lshl_b32 s{sT[0]}, s{sGR}, 2")
    k.I(f"s_add_u32 s{sT[0]}, s{sT[0]}, {WS_G}")
    k.I("s_mov_b32 exec_lo, 1"); k.I("s_mov_b32 exec_hi, 1")
    k.I(f"buffer_store_dword v{ga}, v{gb}, s[{S_WS}:{S_WS+3}], s{sT[0]} offen{SC}")
    k.I("s_mov_b64 exec, -1")
    k.I(f"s_bitcmp1_b32 s{sCG}, 0")
    k.I("s_cbranch_scc1 P1_Y")
    import copy
    saved = (copy.deepcopy(k.vm), copy.deepcopy(k.lg))
    for typ in "XY":
        if typ == "Y":
            k.label("P1_Y"); k.vm, k.lg = copy.deepcopy(saved[0]), copy.deepcopy(saved[1])
        nst = 11 if typ == "X" else 10
        def sync(c):
            k.wait_tag(("st", c)); k.wait(lg=0)
            k.I("s_barrier")
            if c >= 1 and c + 3 < nst: issue_stage(c + 3)
        def reads(s):
            c, ks = divmod(s, 4); hi = (c % 4) >= 2; so = (c % 2) * SLOT
            L = [f"ds_read_b128 a[{aX+4*s}:{aX+4*s+3}], v{vXR + ks + (4 if hi else 0)} offset:{so}"]
            b = aW + (s % 2) * 16
            for u in range(2):
                for T in range(2):
                    for j in range(2):
                        r = b + (u * 2 + T) * 4 + 2 * j
                        L.append(f"ds_read_b64_tr_b16 a[{r}:{r+1}], v{vTR + T + (2 if hi else 0)} offset:{so + 16384 + u*8192 + ks*2048 + j*512}")
            return L
        sync(0)
        k.Is(reads(0))
        for s in range(32):
            nxt = []
            if s + 1 < 32:
                if (s + 1) % 4 == 0:
                    if typ == "Y":
                        c = s // 4; hi = (c % 4) >= 2; so = (c % 2) * SLOT
                        for T in range(2):
                            colsum_block(k, vCS + T + (2 if hi else 0), [so + 16384 + 8192 + j * 512 for j in range(2)], 2 + T)
                    sync((s + 1) // 4)
                nxt = reads(s + 1)
            elif typ == "Y":
                for T in range(2):
                    colsum_block(k, vCS + T + 2, [SLOT + 16384 + 8192 + j * 512 for j in range(2)], 2 + T)
            b = aW + (s % 2) * 16
            x = f"a[{aX+4*s}:{aX+4*s+3}]"
            M = []
            for ti in range(4):
                acc = f"v[{vACC+16*ti}:{vACC+16*ti+15}]"
                wf = f"a[{b+4*ti}:{b+4*ti+3}]"
                cin = acc if s else "0"
                if typ == "X" and ti >= 2: M.append(f"v_mfma_f32_32x32x16_bf16 {acc}, {x}, {wf}, {cin}")
                else: M.append(f"v_mfma_f32_32x32x16_bf16 {acc}, {wf}, {x}, {cin}")
            for hh in range(2):
                xx = f"a[{aX+4*s+2*hh}:{aX+4*s+2*hh+1}]"
                M.append(f"v_mfma_f32_4x4x4_16b_bf16 v[{vST+8*hh}:{vST+8*hh+3}], v[{vONE}:{vONE+1}], {xx}, v[{vST+8*hh}:{vST+8*hh+3}]")
                M.append(f"v_mfma_f32_4x4x4_16b_bf16 v[{vST+8*hh+4}:{vST+8*hh+7}], {xx}, {xx}, v[{vST+8*hh+4}:{vST+8*hh+7}]")
            for i, m in enumerate(M):
                k.I(m)
                if i < 4:
                    for _ in range(3):
                        if nxt: k.I(nxt.pop(0))
        sm, sq, t3 = vT, vT + 1, vT + 2
        k.I(f"v_add_f32 v{sm}, v{vST}, v{vST+8}")
        for i in range(4): k.I(f"v_add_f32 v{vST+4+i}, v{vST+4+i}, v{vST+12+i}")
        k.I(f"v_and_b32 v{t3}, 3, v0")
        k.I(f"v_mov_b32 v{sq}, v{vST+4}")
        for i in range(1, 4):
            k.I(f"v_cmp_eq_u32 vcc, {i}, v{t3}")
            k.I(f"v_cndmask_b32 v{sq}, v{sq}, v{vST+4+i}, vcc")
        half_sum(k, sm, t3); half_sum(k, sq, t3)
        k.I(f"v_mul_f32 v{sm}, {fb(-1.0/512)}, v{sm}")
        k.I(f"v_mul_f32 v{sq}, {fb(1.0/512)}, v{sq}")
        k.I(f"v_fma_f32 v{sq}, -v{sm}, v{sm}, v{sq}")
        k.I(f"v_max_f32 v{sq}, 0, v{sq}")
        k.I(f"v_add_f32 v{sq}, {fb(1e-5)}, v{sq}")
        k.I(f"v_rsq_f32 v{t3}, v{sq}")
        k.I(f"v_mul_f32 v{vGC+4}, v{sq}, v{t3}")
        k.I(f"v_mov_b32 v{vGC+5}, v{vGC+4}")
        k.I(f"v_mul_f32 v{vGC}, {fb(C0)}, v{t3}")
        k.I(f"v_mov_b32 v{vGC+1}, v{vGC}")
        k.I(f"v_mul_f32 v{vGC+2}, v{t3}, v{t3}")
        k.I(f"v_mul_f32 v{vGC+2}, v{vGC+2}, v{t3}")
        k.I(f"v_mul_f32 v{vGC+2}, {fb(C1)}, v{vGC+2}")
        k.I(f"v_mov_b32 v{vGC+3}, v{vGC+2}")
        a1, a2, b1_, b2_ = vT + 3, vT + 4, vT + 5, vT + 6
        k.I(f"v_and_b32 v{a1}, 0xffff0000, v{sm}"); k.I(f"v_sub_f32 v{a1}, v{sm}, v{a1}")
        k.I(f"v_and_b32 v{a2}, 0xffff0000, v{a1}"); k.I(f"v_sub_f32 v{a2}, v{a1}, v{a2}")
        k.I(f"v_and_b32 v{b1_}, 0xffff0000, v{vGC+4}"); k.I(f"v_sub_f32 v{b1_}, v{vGC+4}, v{b1_}")
        k.I(f"v_and_b32 v{b2_}, 0xffff0000, v{b1_}"); k.I(f"v_sub_f32 v{b2_}, v{b1_}, v{b2_}")
        k.I(f"v_perm_b32 v{vBF}, v{a1}, v{sm}, s{sPERM}")
        k.I(f"v_perm_b32 v{vBF+1}, v{sm}, v{a2}, s{sPERM}")
        k.I(f"v_perm_b32 v{vBF+2}, v{sm}, v{a1}, s{sPERM}")
        k.I(f"v_perm_b32 v{vBF+3}, v{b1_}, v{vGC+4}, s{sPERM}")
        k.I(f"v_lshrrev_b32 v{b2_}, 16, v{b2_}")
        k.I(f"v_cmp_lt_u32 vcc, 31, v0")
        k.I(f"v_cndmask_b32 v{vBF+3}, v{vBF+3}, v{b2_}, vcc")
        o = vT + 24
        if typ == "X":
            k.I(f"s_add_u32 s{sT[0]}, s{sKVO}, {64*4096}")
            store_tile(k, vACC, sKVO, 0, o)
            store_tile(k, vACC + 16, sT[0], 0, o + 8)
            store_tile(k, vACC + 32, sKVO, 2048, o + 16)
            store_tile(k, vACC + 48, sT[0], 2048, o)
        else:
            k.I(f"s_add_u32 s{sT[0]}, s{sKVO}, {64*2048}")
            store_tile(k, vACC, sKVO, 0, o, 0.25 * LOG2E)
            store_tile(k, vACC + 16, sT[0], 0, o + 8, 0.25 * LOG2E)
            for T in range(2): k.I(f"ds_write_b32 v{vPW}, v{vCSA+2+T} offset:{(2+T)*1024}")
        def tile_pass(acc, addr, kstride, jstride, syncs):
            D = 5
            def rd(s):
                if s in syncs: sync(syncs[s])
                r = aW + (s % 8) * 4
                for j in range(2): k.I(f"ds_read_b64_tr_b16 a[{r+2*j}:{r+2*j+1}], v{addr} offset:{s*kstride + j*jstride}")
            for s in range(D): rd(s)
            for s in range(32):
                r = aW + (s % 8) * 4
                k.I(f"v_mfma_f32_32x32x16_bf16 v[{acc}:{acc+15}], a[{r}:{r+3}], a[{aX+4*s}:{aX+4*s+3}], " + (f"v[{acc}:{acc+15}]" if s else "0"))
                if s + D < 32: rd(s + D)
        def hoff(tile_s, add):
            k.I(f"s_add_u32 s{sT[1]}, s{tile_s}, {add}")
            k.I(f"s_lshl_b32 s{sT[1]}, s{sT[1]}, 11")
            k.I(f"s_add_u32 s{sT[1]}, s{sT[1]}, s{sACTO}")
            return sT[1]
        A2 = vACC + 64
        tile_pass(A2, vTR, 2048, 512, {0: 8, 16: 9})
        if typ == "Y":
            gelu_tile(k, vACC + 32, hoff(sTA, 0), 2)
            gelu_tile(k, vACC + 48, hoff(sTA, 1), 3)
        tile_pass(A2 + 16, vTR + 1, 2048, 512, {})
        for T in range(2):
            colsum_block(k, vCS + T, [i * 8192 + j * 512 for i in range(8) for j in range(2)], T)
            k.I(f"ds_write_b32 v{vPW}, v{vCSA+T} offset:{T*1024}")
        if typ == "X":
            tile_pass(vACC, vTRD, 1024, 256, {0: 10})
            colsum_block(k, vCS + 4, [i * 4096 + j * 256 for i in range(8) for j in range(2)], 2)
            k.I(f"ds_write_b32 v{vPW}, v{vCSA+2} offset:{2*1024}")
        k.wait(lg=0)
        k.I("s_barrier")
        gelu_tile(k, A2, hoff(sTC, 0), 0)
        gelu_tile(k, A2 + 16, hoff(sTC, 1), 1)
        if typ == "X": gelu_tile(k, vACC, hoff(sTD, 0), 2)
        k.I("s_endpgm")
    k.label("P1_END")
    k.I("s_endpgm")

def kd(name, nv=512, acc=256):
    return f""".p2align 6
.amdhsa_kernel {name}
  .amdhsa_next_free_vgpr {nv}
  .amdhsa_next_free_sgpr 102
  .amdhsa_accum_offset {acc}
  .amdhsa_group_segment_fixed_size 0
  .amdhsa_kernarg_size 96
  .amdhsa_user_sgpr_count 2
  .amdhsa_user_sgpr_kernarg_segment_ptr 1
  .amdhsa_system_sgpr_workgroup_id_x 1
.end_amdhsa_kernel
"""
def kernel_text(name, fn):
    k = K(); fn(k)
    sys.stderr.write(f"{name}: {k.ninst} instrs, {k.nnop} nop states\n")
    return f".globl {name}\n.p2align 8\n.type {name},@function\n{name}:\n" + k.text()

if __name__ == "__main__":
    from gen1b import attention, final
    ks = [("p1_kernel", phase1), ("p2_kernel", attention), ("p3_kernel", final)]
    out = "".join(f"; @launch kernel={n} grid=(256,1,1) block=(256,1,1) lds=163840\n" for n, _ in ks)
    out += '.amdgcn_target "amdgcn-amd-amdhsa--gfx950"\n.text\n'
    out += "".join(kernel_text(n, f) for n, f in ks)
    out += '.section .rodata,"a"\n' + "".join(kd(n) for n, _ in ks)
    open(sys.argv[1], "w").write(out)
```
